```python
import torch

def _softmax(x, axis=-1):
    return torch.softmax(x, dim=axis)
def _gelu(x):
    return torch.nn.functional.gelu(x, approximate="tanh")
def _silu(x):
    return torch.nn.functional.silu(x)
def _sigmoid(x):
    return torch.sigmoid(x)
def _layernorm(x, axis=-1, eps=1e-5):
    m = x.mean(dim=axis, keepdim=True)
    v = x.var(dim=axis, keepdim=True, unbiased=False)
    return (x - m) / torch.sqrt(v + eps)
def _scatter_add(tgt, idx, src, axis=0):
    return tgt.clone().index_add_(axis, idx, src)
def _segment_sum(src, seg, n):
    out = torch.zeros((n,) + src.shape[1:], dtype=src.dtype)
    return out.index_add_(0, seg, src)
def _pad(x, pw):
    flat = tuple(v for pair in reversed(pw) for v in pair)
    return torch.nn.functional.pad(x, flat)

kernel_name = 'standalone__gqa_block_cached__near_ridge'

def setup_inputs():

    _w = (lambda a: (lambda t: t.to(torch.bfloat16) if t.is_floating_point() else t)(torch.as_tensor(a)))
    B, Sq, D = 8, 112, 448
    Hq, Hkv, Sk, Dh = 16, 8, 1024, 256
    assert Hq % Hkv == 0, (Hq, Hkv)
    return {
        "x": _w((lambda *s: torch.randn(*s, dtype=torch.bfloat16) * 0.8)(B, Sq, D)),
        "k_cache": _w((lambda *s: torch.randn(*s, dtype=torch.bfloat16) * 0.8)(B, Hkv, Sk, Dh)),
        "v_cache": _w((lambda *s: torch.randn(*s, dtype=torch.bfloat16) * 0.05)(B, Hkv, Sk, Dh)),
        "wq": _w((lambda *s: torch.randn(*s, dtype=torch.bfloat16) * 0.8)(D, Hq * Dh) * (D ** -0.5)),
        "wo": _w((lambda *s: torch.randn(*s, dtype=torch.bfloat16) * 0.05)(Hq * Dh, D) * ((Hq * Dh) ** -0.5)),
    }

def reference(x, k_cache, v_cache, wq, wo):
    B, Sq, D = x.shape
    Hq, Dh = 16, 256
    Hkv = k_cache.shape[1]
    rep = Hq // Hkv
    q = (lambda x, *d: x.permute(*d))((x @ wq).reshape(B, Sq, Hq, Dh), 0, 2, 1, 3)
    k = (lambda x, n, axis: torch.repeat_interleave(x, n, dim=axis))(k_cache, rep, axis=1)
    v = (lambda x, n, axis: torch.repeat_interleave(x, n, dim=axis))(v_cache, rep, axis=1)
    scores = torch.einsum("bhqd,bhkd->bhqk", q, k) * (Dh ** -0.5)
    p = _softmax(scores, axis=-1)
    o = torch.einsum("bhqk,bhkd->bhqd", p, v)
    return (lambda x, *d: x.permute(*d))(o, 0, 2, 1, 3).reshape(B, Sq, Hq * Dh) @ wo
```

```python
class Asm:
    def __init__(self):
        self.lines = []
    def __call__(self, s):
        self.lines.append("    " + s)
    def label(self, s):
        self.lines.append(s + ":")
    def comment(self, s):
        self.lines.append("    ; " + s)
    def raw(self, s):
        self.lines.append(s)
    def nop(self, n):
        while n > 0:
            k = min(n, 16)
            self("s_nop %d" % (k - 1))
            n -= k
    def text(self):
        return "\n".join(self.lines) + "\n"

def vr(a, n=1):
    return "v%d" % a if n == 1 else "v[%d:%d]" % (a, a + n - 1)
def ar(a, n=1):
    return "a%d" % a if n == 1 else "a[%d:%d]" % (a, a + n - 1)
def sr(a, n=1):
    return "s%d" % a if n == 1 else "s[%d:%d]" % (a, a + n - 1)

def srd(A, d, base_lo, base_hi, size):
    A("s_mov_b32 s%d, s%d" % (d, base_lo))
    A("s_and_b32 s%d, s%d, 0xffff" % (d + 1, base_hi))
    A("s_mov_b32 s%d, 0x%x" % (d + 2, size))
    A("s_mov_b32 s%d, 0x00020000" % (d + 3))

def kdesc(name, vgpr, sgpr, accum):
    return """.section .rodata,"a"
.p2align 6
.amdhsa_kernel %s
  .amdhsa_next_free_vgpr %d
  .amdhsa_next_free_sgpr %d
  .amdhsa_accum_offset %d
  .amdhsa_group_segment_fixed_size 0
  .amdhsa_kernarg_size 64
  .amdhsa_user_sgpr_count 2
  .amdhsa_user_sgpr_kernarg_segment_ptr 1
  .amdhsa_system_sgpr_workgroup_id_x 1
.end_amdhsa_kernel
.text
""" % (name, vgpr, sgpr, accum)
```

```python
from asmlib import *
import struct

Q_BYTES = 64 * 224 * 256 * 2
KV_BYTES = 8 * 8 * 1024 * 256 * 2
O_BYTES = 896 * 4096 * 2

def f2u(f):
    return struct.unpack("<I", struct.pack("<f", f))[0]

def gen_attn(name):
    A = Asm()
    A.raw(".globl %s" % name)
    A.raw(".p2align 8")
    A.raw(".type %s,@function" % name)
    A.label(name)
    A("s_cmp_ge_u32 s2, 256")
    A("s_cbranch_scc1 %s_end" % name)
    A("s_load_dwordx2 s[4:5], s[0:1], 8")
    A("s_load_dwordx2 s[6:7], s[0:1], 16")
    A("s_load_dwordx2 s[8:9], s[0:1], 56")
    A("s_and_b32 s24, s2, 7")
    A("s_lshr_b32 s25, s2, 3")
    A("s_lshr_b32 s27, s25, 2")
    A("s_and_b32 s25, s25, 3")
    A("s_lshl_b32 s27, s27, 3")
    A("s_add_u32 s24, s24, s27")
    A("v_and_b32 v1, 63, v0")
    A("v_lshrrev_b32 v2, 6, v0")
    A("s_nop 0")
    A("v_readfirstlane_b32 s26, v2")
    A("s_waitcnt lgkmcnt(0)")
    A("s_and_b32 s27, s26, 1")
    A("s_lshr_b32 s28, s26, 1")
    A("s_lshl_b32 s29, s25, 1")
    A("s_add_u32 s29, s29, s27")
    srd(A, 12, 8, 9, Q_BYTES)
    A("s_cmp_lt_u32 s26, 2")
    A("s_cselect_b32 s16, s4, s6")
    A("s_cselect_b32 s17, s5, s7")
    A("s_and_b32 s17, s17, 0xffff")
    A("s_mov_b32 s18, 0x%x" % KV_BYTES)
    A("s_mov_b32 s19, 0x00020000")
    A("s_add_u32 s20, s8, 0x800000")
    A("s_addc_u32 s21, s9, 0")
    A("s_and_b32 s21, s21, 0xffff")
    A("s_mov_b32 s22, 0x%x" % O_BYTES)
    A("s_mov_b32 s23, 0x00020000")
    A("s_mov_b32 s33, 0x%x" % f2u(1.4426950408889634 / 16.0))
    A("v_and_b32 v3, 31, v1")
    A("v_lshrrev_b32 v4, 5, v1")
    A("s_mul_i32 s34, s24, 224")
    A("s_lshl_b32 s35, s29, 5")
    A("s_add_u32 s34, s34, s35")
    A("v_add_u32 v5, s34, v3")
    A("v_lshlrev_b32 v5, 9, v5")
    A("v_lshlrev_b32 v6, 4, v4")
    A("v_add_u32 v5, v5, v6")
    for j in range(16):
        A("buffer_load_dwordx4 %s, v5, s[12:15], 0 offen offset:%d" % (ar(4 * j, 4), 32 * j))
    A("v_lshrrev_b32 v4, 5, v1")
    A("v_and_b32 v6, 31, v1")
    A("s_cmp_lt_u32 s26, 2")
    A("s_cbranch_scc0 %s_vsw" % name)
    for n in range(8):
        A("v_add_u32 v7, %d, v4" % (2 * n))
        A("v_xor_b32 v7, v7, v6")
        A("v_lshlrev_b32 v7, 4, v7")
        A("v_lshlrev_b32 v8, 9, v4")
        A("v_add_u32 v%d, v7, v8" % (28 + n))
    A("s_branch %s_swdone" % name)
    A.label("%s_vsw" % name)
    for n in range(8):
        A("v_add_u32 v7, %d, v4" % (2 * n))
        A("v_and_b32 v7, 3, v7")
        A("v_lshlrev_b32 v7, 2, v7")
        A("v_xor_b32 v7, v7, v6")
        A("v_lshlrev_b32 v7, 4, v7")
        A("v_lshlrev_b32 v8, 9, v4")
        A("v_add_u32 v%d, v7, v8" % (28 + n))
    A.label("%s_swdone" % name)
    A("s_lshl_b32 s30, s24, 19")
    A("s_and_b32 s34, s26, 1")
    A("s_lshl_b32 s34, s34, 18")
    A("s_add_u32 s30, s30, s34")
    A("s_lshl_b32 s31, s26, 14")
    def dma_tile():
        A("s_mov_b32 s34, s30")
        A("s_mov_b32 s35, s31")
        for n in range(16):
            if n % 4 == 0:
                A("s_mov_b32 m0, s35")
            A("s_nop 0")
            A("buffer_load_dwordx4 v%d, s[16:19], s34 offen offset:%d lds" % (28 + (n & 7), (n & 3) * 1024))
            if n % 4 == 3 and n < 15:
                A("s_add_u32 s34, s34, 4096")
                A("s_add_u32 s35, s35, 4096")
    dma_tile()
    A("s_add_u32 s30, s30, 16384")
    A("s_xor_b32 s31, s31, 0x10000")
    A("v_and_b32 v3, 31, v1")
    A("v_lshrrev_b32 v4, 5, v1")
    A("v_and_b32 v5, 15, v1")
    A("v_lshlrev_b32 v6, 9, v3")
    A("s_lshl_b32 s34, s28, 14")
    A("v_add_u32 v6, s34, v6")
    for jj in range(8):
        A("v_add_u32 v7, %d, v4" % (2 * jj))
        A("v_xor_b32 v7, v7, v5")
        A("v_lshlrev_b32 v7, 4, v7")
        A("v_add_u32 v%d, v6, v7" % (16 + jj))
    A("v_and_b32 v5, 15, v1")
    A("v_lshrrev_b32 v5, 2, v5")
    A("v_lshlrev_b32 v6, 2, v4")
    A("v_add_u32 v6, v6, v5")
    A("v_lshlrev_b32 v6, 9, v6")
    A("v_add_u32 v6, s34, v6")
    A("v_add_u32 v6, 32768, v6")
    A("v_lshrrev_b32 v7, 4, v1")
    A("v_and_b32 v7, 1, v7")
    A("v_lshlrev_b32 v7, 5, v7")
    A("v_add_u32 v6, v6, v7")
    A("v_and_b32 v7, 3, v1")
    A("v_lshlrev_b32 v7, 3, v7")
    A("v_add_u32 v6, v6, v7")
    for d in range(4):
        A("v_xor_b32 v7, %d, v5" % d)
        A("v_lshlrev_b32 v7, 6, v7")
        A("v_add_u32 v%d, v6, v7" % (24 + d))
    M, L = 36, 37
    S = 112
    P = 104
    O = 128
    A("v_mov_b32 v%d, 0x%x" % (M, f2u(-1e30)))
    A("v_mov_b32 v%d, 0" % L)
    for r in range(128):
        A("v_mov_b32 v%d, 0" % (O + r))
    A("s_mov_b32 s32, 0")
    A.label("%s_loop" % name)
    A("s_waitcnt vmcnt(0)")
    A("s_barrier")
    A("s_cmp_ge_u32 s32, 15")
    A("s_cbranch_scc1 %s_noload" % name)
    dma_tile()
    A("s_add_u32 s30, s30, 16384")
    A("s_xor_b32 s31, s31, 0x10000")
    A.label("%s_noload" % name)
    KF, VF = 64, 128
    def kread(j):
        A("ds_read_b128 %s, v%d offset:%d" % (ar(KF + 4 * j, 4), 16 + (j & 7), (j >> 3) * 256))
    for j in range(8):
        kread(j)
    for j in range(16):
        A("s_waitcnt lgkmcnt(%d)" % min(7, 15 - j))
        cin = "0" if j == 0 else vr(S, 16)
        A("v_mfma_f32_32x32x16_bf16 %s, %s, %s, %s" % (vr(S, 16), ar(KF + 4 * j, 4), ar(4 * j, 4), cin))
        if j + 8 <= 15:
            kread(j + 8)
    def vread(x):
        f, g = x >> 1, x & 1
        s_, dt = f >> 3, f & 7
        A("ds_read_b64_tr_b16 %s, v%d offset:%d" % (ar(VF + 4 * f + 2 * g, 2), 24 + (dt & 3), (dt >> 2) * 256 + (16 * s_ + 8 * g) * 512))
    for x in range(12):
        vread(x)
    A.nop(8)
    T0, T1, T2 = 38, 39, 40
    A("v_max3_f32 v%d, v%d, v%d, v%d" % (T0, S, S + 1, S + 2))
    for r in range(3, 15, 2):
        A("v_max3_f32 v%d, v%d, v%d, v%d" % (T0, T0, S + r, S + r + 1))
    A("v_max_f32 v%d, v%d, v%d" % (T0, T0, S + 15))
    A("v_mov_b32 v%d, v%d" % (T1, T0))
    A("v_mov_b32 v%d, v%d" % (T2, T0))
    A("s_nop 1")
    A("v_permlane32_swap_b32 v%d, v%d" % (T1, T2))
    A("v_max_f32 v%d, v%d, v%d" % (T0, T1, T2))
    A("v_mul_f32 v%d, s33, v%d" % (T0, T0))
    A("v_max_f32 v%d, v%d, v%d" % (T0, M, T0))
    A("v_sub_f32 v%d, v%d, v%d" % (T1, M, T0))
    A("v_exp_f32 v%d, v%d" % (T1, T1))
    A("v_mov_b32 v%d, v%d" % (M, T0))
    for r in range(16):
        A("v_fma_f32 v%d, v%d, s33, -v%d" % (S + r, S + r, M))
        A("v_exp_f32 v%d, v%d" % (S + r, S + r))
    A("s_nop 0")
    A("v_mul_f32 v%d, v%d, v%d" % (L, L, T1))
    for r in range(16):
        A("v_add_f32 v%d, v%d, v%d" % (L, L, S + r))
    for r in range(8):
        A("v_cvt_pk_bf16_f32 v%d, v%d, v%d" % (P + r, S + 2 * r, S + 2 * r + 1))
    for r in range(128):
        A("v_mul_f32 v%d, v%d, v%d" % (O + r, O + r, T1))
    A("s_nop 1")
    for f in range(16):
        s_, dt = f >> 3, f & 7
        issued = min(32, max(12, 2 * f + 12))
        A("s_waitcnt lgkmcnt(%d)" % (issued - (2 * f + 2)))
        A("v_mfma_f32_32x32x16_bf16 %s, %s, %s, %s" % (vr(O + 16 * dt, 16), ar(VF + 4 * f, 4), vr(P + 4 * s_, 4), vr(O + 16 * dt, 16)))
        for x in range(issued, min(32, 2 * (f + 1) + 12)):
            vread(x)
    for a in range(16, 28):
        A("v_xor_b32 v%d, 0x10000, v%d" % (a, a))
    A("s_add_u32 s32, s32, 1")
    A("s_cmp_lt_u32 s32, 16")
    A("s_cbranch_scc1 %s_loop" % name)
    A.nop(16)
    A("v_mov_b32 v%d, v%d" % (T1, L))
    A("v_mov_b32 v%d, v%d" % (T2, L))
    A("s_nop 1")
    A("v_permlane32_swap_b32 v%d, v%d" % (T1, T2))
    A("v_add_f32 v%d, v%d, v%d" % (L, T1, T2))
    A("s_barrier")
    A("v_lshlrev_b32 v3, 4, v1")
    A("s_mul_i32 s34, s27, 34816")
    A("v_add_u32 v3, s34, v3")
    A("v_lshlrev_b32 v4, 2, v1")
    A("v_add_u32 v4, s34, v4")
    A("s_cmp_eq_u32 s28, 0")
    A("s_cbranch_scc1 %s_comb" % name)
    for g in range(32):
        A("ds_write_b128 v3, %s offset:%d" % (vr(O + 4 * g, 4), g * 1024))
    A("ds_write_b32 v4, v%d offset:32768" % M)
    A("ds_write_b32 v4, v%d offset:33024" % L)
    A("s_waitcnt lgkmcnt(0)")
    A("s_barrier")
    A("s_branch %s_end" % name)
    A.label("%s_comb" % name)
    A("s_barrier")
    A("ds_read_b32 v%d, v4 offset:32768" % T1)
    A("ds_read_b32 v%d, v4 offset:33024" % T2)
    A("s_waitcnt lgkmcnt(0)")
    A("v_max_f32 v%d, v%d, v%d" % (T0, M, T1))
    A("v_sub_f32 v%d, v%d, v%d" % (M, M, T0))
    A("v_sub_f32 v%d, v%d, v%d" % (T1, T1, T0))
    A("v_exp_f32 v%d, v%d" % (M, M))
    A("v_exp_f32 v%d, v%d" % (T1, T1))
    A("s_nop 0")
    A("v_mul_f32 v%d, v%d, v%d" % (L, L, M))
    A("v_fmac_f32 v%d, v%d, v%d" % (L, T2, T1))
    A("v_rcp_f32 v%d, v%d" % (L, L))
    A("s_nop 0")
    A("v_mul_f32 v%d, v%d, v%d" % (M, M, L))
    A("v_mul_f32 v%d, v%d, v%d" % (T1, T1, L))
    X = 44
    for g in range(32):
        A("ds_read_b128 %s, v3 offset:%d" % (vr(X + 4 * (g & 1), 4), g * 1024))
        A("s_waitcnt lgkmcnt(0)")
        for e in range(4):
            A("v_mul_f32 v%d, v%d, v%d" % (O + 4 * g + e, O + 4 * g + e, M))
            A("v_fmac_f32 v%d, v%d, v%d" % (O + 4 * g + e, X + 4 * (g & 1) + e, T1))
    A("v_and_b32 v3, 31, v1")
    A("s_lshl_b32 s34, s29, 5")
    A("v_add_u32 v3, s34, v3")
    A("v_cmp_le_u32 vcc, 112, v3")
    A("v_subrev_u32 v4, 112, v3")
    A("s_nop 1")
    A("v_cndmask_b32 v4, v3, v4, vcc")
    A("v_cndmask_b32 v5, 0, 1, vcc")
    A("s_lshr_b32 s34, s24, 3")
    A("s_mul_i32 s34, s34, 112")
    A("v_add_u32 v4, s34, v4")
    A("v_lshlrev_b32 v4, 13, v4")
    A("s_and_b32 s35, s24, 7")
    A("s_lshl_b32 s35, s35, 1")
    A("v_add_u32 v5, s35, v5")
    A("v_lshlrev_b32 v5, 9, v5")
    A("v_add_u32 v4, v4, v5")
    A("v_lshrrev_b32 v6, 5, v1")
    A("v_lshlrev_b32 v6, 3, v6")
    A("v_add_u32 v4, v4, v6")
    A("v_cmp_gt_u32 vcc, 224, v3")
    A("v_mov_b32 v7, 0x80000000")
    A("s_nop 1")
    A("v_cndmask_b32 v4, v7, v4, vcc")
    for dt in range(8):
        for g in range(4):
            r0 = O + 16 * dt + 4 * g
            t = X + 2 * ((4 * dt + g) & 3)
            A("v_cvt_pk_bf16_f32 v%d, v%d, v%d" % (t, r0, r0 + 1))
            A("v_cvt_pk_bf16_f32 v%d, v%d, v%d" % (t + 1, r0 + 2, r0 + 3))
            A("buffer_store_dwordx2 %s, v4, s[20:23], 0 offen offset:%d" % (vr(t, 2), (32 * dt + 8 * g) * 2))
            A("s_nop 1")
    A.label("%s_end" % name)
    A("s_endpgm")
    return A.text(), kdesc(name, 512, 40, 256)
```

```python
from asmlib import *

O_BYTES = 896 * 4096 * 2
WO_BYTES = 4096 * 448 * 2
OP_BYTES = 8 * 896 * 448 * 4
OUT_BYTES = 896 * 448 * 2

def gen_oproj(name):
    A = Asm()
    A.raw(".globl %s" % name)
    A.raw(".p2align 8")
    A.raw(".type %s,@function" % name)
    A.label(name)
    A("s_cmp_ge_u32 s2, 224")
    A("s_cbranch_scc1 %s_end" % name)
    A("s_load_dwordx2 s[6:7], s[0:1], 32")
    A("s_load_dwordx2 s[8:9], s[0:1], 56")
    A("s_and_b32 s24, s2, 7")
    A("s_lshr_b32 s25, s2, 3")
    A("s_and_b32 s27, s25, 3")
    A("s_lshr_b32 s25, s25, 2")
    A("v_and_b32 v1, 63, v0")
    A("v_lshrrev_b32 v2, 6, v0")
    A("s_nop 0")
    A("v_readfirstlane_b32 s26, v2")
    A("s_waitcnt lgkmcnt(0)")
    A("s_add_u32 s12, s8, 0x800000")
    A("s_addc_u32 s13, s9, 0")
    A("s_and_b32 s13, s13, 0xffff")
    A("s_mov_b32 s14, 0x%x" % O_BYTES)
    A("s_mov_b32 s15, 0x00020000")
    srd(A, 16, 6, 7, WO_BYTES)
    A("s_add_u32 s20, s8, 0x1000000")
    A("s_addc_u32 s21, s9, 0")
    A("s_and_b32 s21, s21, 0xffff")
    A("s_mov_b32 s22, 0x%x" % OP_BYTES)
    A("s_mov_b32 s23, 0x00020000")
    A("v_and_b32 v3, 31, v1")
    A("v_lshrrev_b32 v4, 5, v1")
    A("s_lshl_b32 s28, s25, 7")
    A("s_lshl_b32 s29, s26, 5")
    A("s_add_u32 s28, s28, s29")
    A("v_add_u32 v5, s28, v3")
    A("v_lshlrev_b32 v10, 13, v5")
    A("v_lshlrev_b32 v6, 4, v4")
    A("v_add_u32 v10, v10, v6")
    A("s_lshl_b32 s29, s24, 10")
    A("v_add_u32 v10, s29, v10")
    XF = 32
    for j in range(32):
        A("buffer_load_dwordx4 %s, v10, s[12:15], 0 offen offset:%d" % (vr(XF + 4 * j, 4), 32 * j))
    A("v_lshrrev_b32 v7, 4, v1")
    A("v_and_b32 v8, 15, v1")
    A("v_lshrrev_b32 v9, 2, v8")
    A("v_xor_b32 v9, v9, v7")
    A("v_lshlrev_b32 v9, 2, v9")
    A("v_and_b32 v8, 3, v8")
    A("v_or_b32 v9, v9, v8")
    A("v_lshlrev_b32 v9, 4, v9")
    A("s_movk_i32 s28, 896")
    A("v_mul_lo_u32 v7, v7, s28")
    A("v_add_u32 v11, v7, v9")
    A("s_mul_i32 s28, s27, 224")
    A("v_add_u32 v11, s28, v11")
    A("s_mul_i32 s30, s24, 458752")
    A("s_mul_i32 s28, s26, 3584")
    A("s_add_u32 s30, s30, s28")
    A("s_lshl_b32 s31, s26, 10")
    for m in range(32):
        A("s_mov_b32 m0, s31")
        A("s_nop 0")
        A("buffer_load_dwordx4 v11, s[16:19], s30 offen lds")
        A("s_add_u32 s30, s30, 14336")
        A("s_add_u32 s31, s31, 4096")
    A("v_lshrrev_b32 v4, 5, v1")
    A("v_and_b32 v5, 15, v1")
    A("v_lshrrev_b32 v5, 2, v5")
    A("v_lshlrev_b32 v6, 3, v4")
    A("v_add_u32 v6, v6, v5")
    A("v_lshlrev_b32 v6, 8, v6")
    A("v_lshrrev_b32 v7, 4, v1")
    A("v_and_b32 v7, 1, v7")
    A("v_lshlrev_b32 v7, 5, v7")
    A("v_add_u32 v6, v6, v7")
    A("v_and_b32 v7, 3, v1")
    A("v_lshlrev_b32 v7, 3, v7")
    A("v_add_u32 v6, v6, v7")
    for u in range(4):
        A("v_xor_b32 v7, %d, v5" % u)
        A("v_lshlrev_b32 v7, 6, v7")
        A("v_add_u32 v%d, v6, v7" % (16 + u))
        A("v_add_u32 v%d, 0x10000, v%d" % (20 + u, 16 + u))
    ACC = 160
    AF = 224
    for c in range(4):
        A("s_waitcnt vmcnt(%d)" % (24 - 8 * c))
        A("s_barrier")
        for jj in range(8):
            j = 8 * c + jj
            buf = AF + 16 * (j & 1)
            for u in range(4):
                for g in range(2):
                    if j < 16:
                        ad, off = 16 + u, (16 * j + 4 * g) * 256
                    else:
                        ad, off = 20 + u, (16 * (j - 16) + 4 * g) * 256
                    A("ds_read_b64_tr_b16 %s, v%d offset:%d" % (vr(buf + 4 * u + 2 * g, 2), ad, off))
            A("s_waitcnt lgkmcnt(0)")
            for u in range(4):
                cin = "0" if j == 0 else vr(ACC + 16 * u, 16)
                A("v_mfma_f32_32x32x16_bf16 %s, %s, %s, %s" % (vr(ACC + 16 * u, 16), vr(buf + 4 * u, 4), vr(XF + 4 * j, 4), cin))
    A.nop(16)
    A("v_and_b32 v3, 31, v1")
    A("s_lshl_b32 s28, s25, 7")
    A("s_lshl_b32 s29, s26, 5")
    A("s_add_u32 s28, s28, s29")
    A("s_mul_i32 s29, s24, 896")
    A("s_add_u32 s28, s28, s29")
    A("v_add_u32 v5, s28, v3")
    A("s_movk_i32 s28, 1792")
    A("v_mul_lo_u32 v12, v5, s28")
    A("s_mul_i32 s29, s27, 448")
    A("v_add_u32 v12, s29, v12")
    A("v_lshrrev_b32 v4, 5, v1")
    A("v_lshlrev_b32 v4, 4, v4")
    A("v_add_u32 v12, v12, v4")
    for u in range(4):
        for g in range(4):
            if u == 3 and g >= 2:
                continue
            r0 = ACC + 16 * u + 4 * g
            A("buffer_store_dwordx4 %s, v12, s[20:23], 0 offen offset:%d" % (vr(r0, 4), (32 * u + 8 * g) * 4))
    A.label("%s_end" % name)
    A("s_endpgm")
    return A.text(), kdesc(name, 256, 40, 256)

def gen_reduce(name):
    A = Asm()
    A.raw(".globl %s" % name)
    A.raw(".p2align 8")
    A.raw(".type %s,@function" % name)
    A.label(name)
    A("s_cmp_ge_u32 s2, 392")
    A("s_cbranch_scc1 %s_end" % name)
    A("s_load_dwordx2 s[4:5], s[0:1], 40")
    A("s_load_dwordx2 s[8:9], s[0:1], 56")
    A("s_waitcnt lgkmcnt(0)")
    srd(A, 12, 4, 5, OUT_BYTES)
    A("s_add_u32 s20, s8, 0x1000000")
    A("s_addc_u32 s21, s9, 0")
    A("s_and_b32 s21, s21, 0xffff")
    A("s_mov_b32 s22, 0x%x" % OP_BYTES)
    A("s_mov_b32 s23, 0x00020000")
    A("s_lshl_b32 s3, s2, 8")
    A("v_add_u32 v1, s3, v0")
    A("v_lshlrev_b32 v2, 4, v1")
    SZ = 896 * 448 * 4
    A("s_mov_b32 s24, 0")
    for s in range(8):
        A("buffer_load_dwordx4 %s, v2, s[20:23], s24 offen" % vr(8 + 4 * s, 4))
        A("s_add_u32 s24, s24, %d" % SZ)
    A("s_waitcnt vmcnt(0)")
    for s in range(1, 8):
        for e in range(4):
            A("v_add_f32 v%d, v%d, v%d" % (8 + e, 8 + e, 8 + 4 * s + e))
    A("v_cvt_pk_bf16_f32 v4, v8, v9")
    A("v_cvt_pk_bf16_f32 v5, v10, v11")
    A("v_lshlrev_b32 v3, 3, v1")
    A("buffer_store_dwordx2 v[4:5], v3, s[12:15], 0 offen")
    A.label("%s_end" % name)
    A("s_endpgm")
    return A.text(), kdesc(name, 48, 40, 48)
```

```python
from asmlib import *

Q_BYTES = 64 * 224 * 256 * 2
X_BYTES = 8 * 112 * 448 * 2
WQ_BYTES = 448 * 4096 * 2

def gen_qproj(name):
    A = Asm()
    A.raw(".globl %s" % name)
    A.raw(".p2align 8")
    A.raw(".type %s,@function" % name)
    A.label(name)
    A("s_cmp_ge_u32 s2, 256")
    A("s_cbranch_scc1 %s_end" % name)
    A("s_load_dwordx2 s[4:5], s[0:1], 0")
    A("s_load_dwordx2 s[6:7], s[0:1], 24")
    A("s_load_dwordx2 s[8:9], s[0:1], 56")
    A("s_lshr_b32 s24, s2, 5")
    A("s_and_b32 s25, s2, 31")
    A("v_and_b32 v1, 63, v0")
    A("v_lshrrev_b32 v2, 6, v0")
    A("s_nop 0")
    A("v_readfirstlane_b32 s26, v2")
    A("s_waitcnt lgkmcnt(0)")
    srd(A, 12, 4, 5, X_BYTES)
    srd(A, 16, 6, 7, WQ_BYTES)
    srd(A, 20, 8, 9, Q_BYTES)
    A("v_and_b32 v3, 31, v1")
    A("v_lshrrev_b32 v4, 5, v1")
    A("s_lshl_b32 s27, s26, 5")
    A("v_add_u32 v5, s27, v3")
    A("s_movk_i32 s28, 896")
    A("v_mul_lo_u32 v10, v5, s28")
    A("v_lshlrev_b32 v6, 4, v4")
    A("v_add_u32 v10, v10, v6")
    A("s_mul_i32 s29, s24, 100352")
    A("v_add_u32 v10, s29, v10")
    XF = 32
    for j in range(28):
        A("buffer_load_dwordx4 %s, v10, s[12:15], 0 offen offset:%d" % (vr(XF + 4 * j, 4), 32 * j))
    A("v_lshrrev_b32 v7, 4, v1")
    A("v_and_b32 v8, 15, v1")
    A("v_lshrrev_b32 v9, 2, v8")
    A("v_xor_b32 v9, v9, v7")
    A("v_lshlrev_b32 v9, 2, v9")
    A("v_and_b32 v8, 3, v8")
    A("v_or_b32 v9, v9, v8")
    A("v_lshlrev_b32 v9, 4, v9")
    A("v_lshlrev_b32 v7, 13, v7")
    A("v_add_u32 v11, v7, v9")
    A("s_lshl_b32 s27, s25, 8")
    A("v_add_u32 v11, s27, v11")
    A("s_lshl_b32 s30, s26, 15")
    A("s_lshl_b32 s31, s26, 10")
    for m in range(28):
        A("s_mov_b32 m0, s31")
        A("s_nop 0")
        A("buffer_load_dwordx4 v11, s[16:19], s30 offen lds")
        A("s_add_u32 s30, s30, 0x20000")
        A("s_add_u32 s31, s31, 4096")
    A("v_lshrrev_b32 v4, 5, v1")
    A("v_and_b32 v5, 15, v1")
    A("v_lshrrev_b32 v5, 2, v5")
    A("v_lshlrev_b32 v6, 3, v4")
    A("v_add_u32 v6, v6, v5")
    A("v_lshlrev_b32 v6, 8, v6")
    A("v_lshrrev_b32 v7, 4, v1")
    A("v_and_b32 v7, 1, v7")
    A("v_lshlrev_b32 v7, 5, v7")
    A("v_add_u32 v6, v6, v7")
    A("v_and_b32 v7, 3, v1")
    A("v_lshlrev_b32 v7, 3, v7")
    A("v_add_u32 v6, v6, v7")
    for u in range(4):
        A("v_xor_b32 v7, %d, v5" % u)
        A("v_lshlrev_b32 v7, 6, v7")
        A("v_add_u32 v%d, v6, v7" % (16 + u))
        A("v_add_u32 v%d, 57344, v%d" % (20 + u, 16 + u))
    ACC = 144
    AF = 208
    for c in range(4):
        A("s_waitcnt vmcnt(%d)" % (21 - 7 * c))
        A("s_barrier")
        for jj in range(7):
            j = 7 * c + jj
            buf = AF + 16 * (j & 1)
            for u in range(4):
                for g in range(2):
                    if j < 14:
                        ad, off = 16 + u, (16 * j + 4 * g) * 256
                    else:
                        ad, off = 20 + u, (16 * (j - 14) + 4 * g) * 256
                    A("ds_read_b64_tr_b16 %s, v%d offset:%d" % (vr(buf + 4 * u + 2 * g, 2), ad, off))
            A("s_waitcnt lgkmcnt(0)")
            for u in range(4):
                cin = "0" if j == 0 else vr(ACC + 16 * u, 16)
                A("v_mfma_f32_32x32x16_bf16 %s, %s, %s, %s" % (vr(ACC + 16 * u, 16), vr(buf + 4 * u, 4), vr(XF + 4 * j, 4), cin))
    A.nop(16)
    A("v_and_b32 v3, 31, v1")
    A("s_lshl_b32 s27, s26, 5")
    A("v_add_u32 v5, s27, v3")
    A("s_lshr_b32 s27, s25, 1")
    A("s_lshl_b32 s28, s24, 4")
    A("s_add_u32 s27, s27, s28")
    A("s_mul_i32 s27, s27, 112")
    A("v_add_u32 v6, s27, v5")
    A("v_lshlrev_b32 v6, 9, v6")
    A("s_and_b32 s28, s25, 1")
    A("s_lshl_b32 s28, s28, 8")
    A("v_add_u32 v6, s28, v6")
    A("v_lshrrev_b32 v4, 5, v1")
    A("v_lshlrev_b32 v4, 3, v4")
    A("v_add_u32 v12, v6, v4")
    A("v_cmp_gt_u32 vcc, 112, v5")
    A("v_mov_b32 v7, 0x80000000")
    A("s_nop 1")
    A("v_cndmask_b32 v12, v7, v12, vcc")
    PK = 240
    for u in range(4):
        for g in range(4):
            r0 = ACC + 16 * u + 4 * g
            t = PK + 2 * ((4 * u + g) & 3)
            A("v_cvt_pk_bf16_f32 v%d, v%d, v%d" % (t, r0, r0 + 1))
            A("v_cvt_pk_bf16_f32 v%d, v%d, v%d" % (t + 1, r0 + 2, r0 + 3))
            A("buffer_store_dwordx2 %s, v12, s[20:23], 0 offen offset:%d" % (vr(t, 2), (32 * u + 8 * g) * 2))
            A("s_nop 1")
    A.label("%s_end" % name)
    A("s_endpgm")
    return A.text(), kdesc(name, 256, 40, 256)
```

```python
import sys
from k_qproj import gen_qproj
from k_attn import gen_attn
from k_oproj import gen_oproj, gen_reduce

HDR = """; Kernarg layout (64 bytes, ptrs only, base s[0:1]):
; @launch kernel=qproj_kernel grid=(256,1,1) block=(256,1,1) lds=114688
; @launch kernel=attn_kernel grid=(256,1,1) block=(256,1,1) lds=131072
; @launch kernel=oproj_kernel grid=(224,1,1) block=(256,1,1) lds=131072
; @launch kernel=reduce_kernel grid=(392,1,1) block=(256,1,1) lds=0
.amdgcn_target "amdgcn-amd-amdhsa--gfx950"
.text
"""
out = HDR
descs = ""
for g, n in ((gen_qproj, "qproj_kernel"), (gen_attn, "attn_kernel"), (gen_oproj, "oproj_kernel"), (gen_reduce, "reduce_kernel")):
    t, d = g(n)
    out += t
    descs += d
out += descs
open(sys.argv[1], "w").write(out)
```

```python
from asmlib import *
import struct
KV_BYTES = 8 * 8 * 1024 * 256 * 2
X_BYTES = 8 * 112 * 448 * 2
WQ_BYTES = 448 * 4096 * 2
WO_BYTES = 4096 * 448 * 2
OP_BYTES = 16 * 896 * 448 * 4
def f2u(f): return struct.unpack("<I", struct.pack("<f", f))[0]
THR = 8.0
import os
STOP=os.environ.get('STOP','')

def gen_fused(name):
    A = Asm()
    A.raw(".globl %s" % name); A.raw(".p2align 8"); A.raw(".type %s,@function" % name); A.label(name)
    A("s_cmp_ge_u32 s2, 256")
    A("s_cbranch_scc1 %s_end" % name)
    A("s_load_dwordx4 s[4:7], s[0:1], 0")
    A("s_load_dwordx4 s[8:11], s[0:1], 16")
    A("s_load_dwordx2 s[40:41], s[0:1], 32")
    A("s_load_dwordx2 s[42:43], s[0:1], 56")
    A("s_and_b32 s24, s2, 7")
    A("s_lshr_b32 s25, s2, 3")
    A("s_lshr_b32 s27, s25, 2")
    A("s_and_b32 s25, s25, 3")
    A("s_lshl_b32 s27, s27, 3")
    A("s_add_u32 s24, s24, s27")
    A("v_and_b32 v1, 63, v0")
    A("v_lshrrev_b32 v2, 6, v0")
    A("s_nop 0")
    A("v_readfirstlane_b32 s26, v2")
    A("s_lshr_b32 s28, s24, 3")
    A("s_and_b32 s29, s24, 7")
    A("s_lshl_b32 s29, s29, 1")
    A("s_lshr_b32 s27, s25, 1")
    A("s_add_u32 s29, s29, s27")
    A("s_and_b32 s27, s25, 1")
    A("s_mul_i32 s27, s27, 56")
    A("s_mul_i32 s31, s26, 40960")
    A("s_lshl_b32 s30, s24, 19")
    A("s_lshl_b32 s34, s26, 17")
    A("s_add_u32 s30, s30, s34")
    A("s_mov_b32 s33, 0x%x" % f2u(1.4426950408889634 / 16.0))
    A("s_waitcnt lgkmcnt(0)")
    srd(A, 12, 6, 7, KV_BYTES)
    srd(A, 16, 8, 9, KV_BYTES)
    srd(A, 20, 4, 5, X_BYTES)
    srd(A, 36, 10, 11, WQ_BYTES)
    for t in range(2):
        A("s_getpc_b64 s[%d:%d]" % (46 + 2 * t, 47 + 2 * t))
        A.label("%s_pc%d" % (name, t))
        A("s_add_u32 s%d, s%d, %s_sub%d-%s_pc%d" % (46 + 2 * t, 46 + 2 * t, name, t, name, t))
        A("s_addc_u32 s%d, s%d, 0" % (47 + 2 * t, 47 + 2 * t))
    if STOP=='0': A('s_branch %s_end' % name)
    A("v_and_b32 v3, 31, v1"); A("v_lshrrev_b32 v4, 5, v1")
    A("v_lshlrev_b32 v5, 4, v1")
    A("s_mul_i32 s34, s28, 112"); A("s_add_u32 s34, s34, s27"); A("s_mul_i32 s34, s34, 896")
    A("s_mul_i32 s35, s26, 14336"); A("s_add_u32 s34, s34, s35"); A("s_add_u32 s35, s35, 98304")
    for n in range(14):
        A("s_add_u32 m0, s35, %d" % (n * 1024)); A("s_add_u32 s32, s34, %d" % (n * 1024))
        A("buffer_load_dwordx4 v5, s[20:23], s32 offen lds")
    A("s_mul_i32 s31, s26, 24576")
    A("v_lshrrev_b32 v5, 3, v1")
    A("v_and_b32 v6, 7, v1")
    A("v_and_b32 v7, 1, v5"); A("v_lshlrev_b32 v7, 2, v7"); A("v_xor_b32 v6, v6, v7")
    A("v_lshlrev_b32 v6, 4, v6"); A("v_lshlrev_b32 v5, 13, v5"); A("v_add_u32 v7, v5, v6")
    A("s_lshl_b32 s34, s29, 9"); A("s_lshl_b32 s35, s26, 7"); A("s_add_u32 s34, s34, s35")
    A("v_add_u32 v7, s34, v7")
    def wq_chunk(c):
        for n in range(8):
            A("s_add_u32 m0, s31, %d" % ((c % 3) * 8192 + n * 1024))
            A("s_mov_b32 s34, %d" % ((c * 8 + n) * 65536))
            A("buffer_load_dwordx4 v7, s[36:39], s34 offen lds")
    for c in range(3): wq_chunk(c)
    if STOP=='4': A('s_waitcnt vmcnt(0)'); A('s_branch %s_end' % name)
    A("v_and_b32 v5, 15, v1"); A("v_lshrrev_b32 v5, 2, v5")
    A("v_lshlrev_b32 v6, 3, v4"); A("v_add_u32 v6, v6, v5"); A("v_lshlrev_b32 v6, 7, v6")
    A("v_lshrrev_b32 v8, 4, v1"); A("v_and_b32 v8, 1, v8"); A("v_lshlrev_b32 v8, 5, v8"); A("v_add_u32 v6, v6, v8")
    A("v_and_b32 v8, 3, v1"); A("v_lshlrev_b32 v8, 3, v8"); A("v_add_u32 v6, v6, v8")
    A("v_add_u32 v6, s31, v6"); A("v_and_b32 v5, 1, v5")
    for u in range(2):
        A("v_xor_b32 v9, %d, v5" % u); A("v_lshlrev_b32 v9, 6, v9"); A("v_add_u32 v%d, v6, v9" % (8 + u))
    A("s_waitcnt vmcnt(24)"); A("s_barrier")
    A("s_movk_i32 s34, 896"); A("v_mul_lo_u32 v5, v3, s34"); A("v_lshlrev_b32 v6, 4, v4"); A("v_add_u32 v5, v5, v6"); A("v_add_u32 v5, 98304, v5")
    for t in range(2):
        for j in range(28):
            A("ds_read_b128 %s, v5 offset:%d" % (vr(32 + 112 * t + 4 * j, 4), 28672 * t + 32 * j))
    for c in range(7):
        A("s_waitcnt vmcnt(%d)" % (8 * (min(c + 2, 6) - c)))
        for jj in range(4):
            j = 4 * c + jj
            for u in range(2):
                for g in range(2):
                    A("ds_read_b64_tr_b16 %s, v%d offset:%d" % (ar(64 + 8 * (j & 1) + 4 * u + 2 * g, 2), 8 + u, (c % 3) * 8192 + (16 * jj + 4 * g) * 128))
            A("s_waitcnt lgkmcnt(0)")
            for u in range(2):
                for t in range(2):
                    acc = ar(32 * u + 16 * t, 16)
                    A("v_mfma_f32_32x32x16_bf16 %s, %s, %s, %s" % (acc, ar(64 + 8 * (j & 1) + 4 * u, 4), vr(32 + 112 * t + 4 * j, 4), "0" if j == 0 else acc))
        if c + 3 < 7: wq_chunk(c + 3)
    A.nop(16)
    A("s_barrier")
    A("v_lshlrev_b32 v5, 9, v3"); A("v_lshlrev_b32 v6, 3, v4"); A("v_add_u32 v5, v5, v6")
    A("v_and_b32 v6, 7, v3")
    for u in range(2):
        for jj in range(4):
            A("s_lshl_b32 s34, s26, 3"); A("s_add_u32 s34, s34, %d" % (4 * u + jj))
            A("v_xor_b32 v9, s34, v6"); A("v_lshlrev_b32 v9, 4, v9"); A("v_add_u32 v9, v9, v5")
            for t in range(2):
                for e in range(4):
                    A("v_accvgpr_read_b32 v%d, a%d" % (24 + e, 32 * u + 16 * t + 4 * jj + e))
                A("s_nop 0")
                A("v_cvt_pk_bf16_f32 v28, v24, v25"); A("v_cvt_pk_bf16_f32 v29, v26, v27")
                A("ds_write_b64 v9, v[28:29] offset:%d" % (t * 16384))
    A("s_waitcnt lgkmcnt(0)"); A("s_barrier")
    A("v_lshlrev_b32 v5, 9, v3")
    for jl in range(4):
        A("v_add_u32 v9, %d, v4" % (2 * jl)) if False else None
        A("v_add_u32 v24, %d, v4" % (2 * jl)); A("v_xor_b32 v24, v24, v6"); A("v_lshlrev_b32 v24, 4, v24")
        A("v_add_u32 v%d, v24, v5" % (8 + jl))
    def qfrag_load(base):
        for t in range(2):
            for j in range(16):
                A("ds_read_b128 %s, v%d offset:%d" % (vr(128 + 64 * t + 4 * j, 4), 8 + (j & 3), base + t * 16384 + (j >> 2) * 128))
        A("s_waitcnt lgkmcnt(0)")
    qfrag_load(0)
    A("s_barrier")
    if STOP=='1': A('s_branch %s_end' % name)
    A("s_mul_i32 s31, s26, 40960")
    A("v_mov_b32 v30, v3"); A("v_mov_b32 v31, v4")
    A("v_and_b32 v24, 31, v1")
    for n in range(4):
        A("v_add_u32 v25, %d, v31" % (2 * n)); A("v_xor_b32 v25, v25, v24"); A("v_lshlrev_b32 v25, 4, v25")
        A("v_lshlrev_b32 v26, 9, v31"); A("v_add_u32 v%d, v25, v26" % (2 + n))
    for n in range(2):
        A("v_add_u32 v25, %d, v31" % (2 * n)); A("v_lshlrev_b32 v25, 2, v25"); A("v_xor_b32 v25, v25, v24")
        A("v_lshlrev_b32 v25, 4, v25"); A("v_lshlrev_b32 v26, 9, v31"); A("v_add_u32 v%d, v25, v26" % (6 + n))
    order = [('K', 0, 0), ('K', 0, 1)]
    for i in range(8):
        if i < 7: order += [('K', i + 1, 0), ('K', i + 1, 1)]
        order += [('V', i, 0), ('V', i, 1)]
    pos = {g: p for p, g in enumerate(order)}
    st = {'issued': 0}
    def issue(upto):
        while st['issued'] < min(upto, len(order)):
            p = st['issued']; kind, it, hf = order[p]
            for n in range(8):
                if n % 4 == 0:
                    A("s_add_u32 m0, s31, %d" % ((p % 5) * 8192 + n * 1024))
                    A("s_add_u32 s34, s30, %d" % (it * 16384 + hf * 8192 + n * 1024))
                vo = 2 + (n & 3) if kind == 'K' else 6 + (n & 1)
                A("buffer_load_dwordx4 v%d, s[%d:%d], s34 offen offset:%d lds" % (vo, 12 if kind == 'K' else 16, 15 if kind == 'K' else 19, (n & 3) * 1024))
            st['issued'] += 1
    def wait_for(p):
        A("s_waitcnt vmcnt(%d)" % (8 * (st['issued'] - 1 - p)))
    issue(5)
    A("v_cmp_lt_u32 vcc, 15, v30")
    A("v_mov_b32 v24, 32768"); A("v_mov_b32 v25, -8192")
    A("s_nop 1")
    A("v_cndmask_b32 v24, v24, v25, vcc")
    for jl in range(4):
        A("v_add_u32 v%d, s31, v%d" % (8 + jl, 8 + jl))
        A("v_add_u32 v%d, v%d, v24" % (12 + jl, 8 + jl))
    A("v_and_b32 v27, 15, v1"); A("v_lshrrev_b32 v27, 2, v27")
    A("v_lshlrev_b32 v28, 2, v31"); A("v_add_u32 v28, v28, v27"); A("v_lshlrev_b32 v28, 9, v28"); A("v_add_u32 v28, s31, v28")
    A("v_lshrrev_b32 v29, 4, v1"); A("v_and_b32 v29, 1, v29"); A("v_lshlrev_b32 v29, 5, v29"); A("v_add_u32 v24, v28, v29")
    A("v_and_b32 v29, 3, v1"); A("v_lshlrev_b32 v29, 3, v29"); A("v_add_u32 v24, v24, v29")
    for d in range(4):
        A("v_xor_b32 v25, %d, v27" % d); A("v_lshlrev_b32 v25, 6, v25"); A("v_add_u32 v%d, v24, v25" % (16 + d))
    for r in range(256): A("v_accvgpr_write_b32 a%d, 0" % r)
    A("v_mov_b32 v22, 0"); A("v_mov_b32 v23, 0")
    def s_mfmas(it):
        p0, p1 = pos[('K', it, 0)], pos[('K', it, 1)]
        wrap = (p0 % 5 == 4)
        out = []
        for j in range(16):
            ab = (12 if wrap else 8) + (j & 3)
            off = (0 if wrap else (p0 % 5) * 8192) + (j >> 2) * 128
            rd = "ds_read_b128 %s, v%d offset:%d" % (vr(48 + 4 * (j & 3), 4), ab, off)
            ms = []
            for t in range(2):
                s = vr(64 + 32 * (it & 1) + 16 * t, 16)
                ms.append("v_mfma_f32_32x32x16_bf16 %s, %s, %s, %s" % (s, vr(48 + 4 * (j & 3), 4), vr(128 + 64 * t + 4 * j, 4), "0" if j == 0 else s))
            out.append((rd, ms))
        return out
    def softmax_ops(it):
        ops = []
        for t in range(2):
            S = 64 + 32 * (it & 1) + 16 * t; M = 20 + t; L = 22 + t; T = 24 + 3 * t
            ops.append("v_max3_f32 v%d, v%d, v%d, v%d" % (T, S, S + 1, S + 2))
            for r in range(3, 15, 2): ops.append("v_max3_f32 v%d, v%d, v%d, v%d" % (T, T, S + r, S + r + 1))
            ops.append("v_max_f32 v%d, v%d, v%d" % (T, T, S + 15))
            ops.append("v_mov_b32 v%d, v%d" % (T + 1, T)); ops.append("v_mov_b32 v%d, v%d" % (T + 2, T)); ops.append("s_nop 1")
            ops.append("v_permlane32_swap_b32 v%d, v%d" % (T + 1, T + 2))
            ops.append("v_max_f32 v%d, v%d, v%d" % (T, T + 1, T + 2))
            ops.append("v_mul_f32 v%d, s33, v%d" % (T, T))
            if it == 0:
                ops.append("v_mov_b32 v%d, v%d" % (M, T))
            else:
                lab = "%s_rs%d_%d" % (name, it, t)
                ops.append("v_add_f32 v%d, 0x%x, v%d" % (T + 1, f2u(THR), M))
                ops.append("v_cmp_gt_f32 vcc, v%d, v%d" % (T, T + 1))
                blk = ["s_cbranch_vccz %s" % lab, "s_swappc_b64 s[44:45], s[%d:%d]" % (46 + 2 * t, 47 + 2 * t), lab + ":"]
                ops.append(blk)
            for r in range(16):
                ops.append("v_fma_f32 v%d, v%d, s33, -v%d" % (S + r, S + r, M)); ops.append("v_exp_f32 v%d, v%d" % (S + r, S + r))
            for r in range(16): ops.append("v_add_f32 v%d, v%d, v%d" % (L, L, S + r))
            for r in range(8): ops.append("v_cvt_pk_bf16_f32 v%d, v%d, v%d" % (S + r, S + 2 * r, S + 2 * r + 1))
        return ops
    def emit(o):
        if isinstance(o, list):
            for x in o:
                (A.label(x[:-1]) if x.endswith(":") else A(x))
        else: A(o)
    wait_for(pos[('K', 0, 1)])
    g = s_mfmas(0)
    for j in range(3): A(g[j][0])
    for j in range(16):
        A("s_waitcnt lgkmcnt(%d)" % min(2, 15 - j))
        for m in g[j][1]: A(m)
        if j + 3 < 16: A(g[j + 3][0])
    issue(st['issued'] + 2)
    A.nop(16)
    for it in range(8):
        ops = softmax_ops(it)
        if it < 7:
            wait_for(pos[('K', it + 1, 1)])
            g = s_mfmas(it + 1)
            for j in range(3): A(g[j][0])
            per = (len(ops) + 15) // 16
            for j in range(16):
                A("s_waitcnt lgkmcnt(%d)" % min(2, 15 - j))
                for m in g[j][1]: A(m)
                if j + 3 < 16: A(g[j + 3][0])
                for o in ops[j * per:(j + 1) * per]: emit(o)
            issue(st['issued'] + 2)
        else:
            for o in ops: emit(o)
        A("s_nop 1")
        def vread(f):
            s_, dt = f >> 3, f & 7
            p = pos[('V', it, s_)]
            for gg in range(2):
                A("ds_read_b64_tr_b16 %s, v%d offset:%d" % (vr(32 + 4 * (f & 3) + 2 * gg, 2), 16 + (dt & 3), (p % 5) * 8192 + (dt >> 2) * 256 + 8 * gg * 512))
        wait_for(pos[('V', it, 0)])
        for f in range(3): vread(f)
        for f in range(16):
            s_, dt = f >> 3, f & 7
            A("s_waitcnt lgkmcnt(%d)" % (2 * min(2, 15 - f)))
            for t in range(2):
                A("v_mfma_f32_32x32x16_bf16 %s, %s, %s, %s" % (ar(128 * t + 16 * dt, 16), vr(32 + 4 * (f & 3), 4), vr(64 + 32 * (it & 1) + 16 * t + 4 * s_, 4), ar(128 * t + 16 * dt, 16)))
            if f + 3 < 16:
                if f + 3 == 8: wait_for(pos[('V', it, 1)])
                vread(f + 3)
            if f == 8: issue(st['issued'] + 1)
        issue(st['issued'] + 1)
    if STOP=='2': A('s_waitcnt vmcnt(0)'); A('s_branch %s_end' % name)
    A("v_mov_b32 v3, v30"); A("v_mov_b32 v4, v31")
    A.nop(16)
    A("s_barrier")
    A("v_lshlrev_b32 v30, 2, v1"); A("v_add_u32 v30, 0x20000, v30")
    A("s_lshl_b32 s34, s26, 10"); A("v_add_u32 v31, s34, v30")
    for t in range(2):
        A("v_mov_b32 v24, v%d" % (22 + t)); A("v_mov_b32 v25, v%d" % (22 + t)); A("s_nop 1")
        A("v_permlane32_swap_b32 v24, v25"); A("v_add_f32 v%d, v24, v25" % (22 + t))
        A("ds_write_b32 v31, v%d offset:%d" % (20 + t, 512 * t))
        A("ds_write_b32 v31, v%d offset:%d" % (22 + t, 512 * t + 256))
    A("s_waitcnt lgkmcnt(0)"); A("s_barrier")
    for t in range(2):
        for w in range(4):
            A("ds_read_b32 v%d, v30 offset:%d" % (32 + w, 1024 * w + 512 * t))
            A("ds_read_b32 v%d, v30 offset:%d" % (36 + w, 1024 * w + 512 * t + 256))
        A("s_waitcnt lgkmcnt(0)")
        A("v_max3_f32 v24, v32, v33, v34"); A("v_max_f32 v24, v24, v35")
        A("v_mov_b32 v26, 0")
        for w in range(4):
            A("v_sub_f32 v25, v%d, v24" % (32 + w)); A("v_exp_f32 v25, v25"); A("s_nop 0"); A("v_fmac_f32 v26, v25, v%d" % (36 + w))
        A("v_rcp_f32 v26, v26"); A("v_sub_f32 v25, v%d, v24" % (20 + t)); A("v_exp_f32 v25, v25"); A("s_nop 0")
        A("v_mul_f32 v%d, v25, v26" % (20 + t))
    A("s_barrier")
    A("v_lshlrev_b32 v30, 4, v1")
    A("s_lshl_b32 s34, s26, 15"); A("v_add_u32 v31, s34, v30")
    A("v_lshlrev_b32 v5, 9, v3"); A("v_lshlrev_b32 v6, 3, v4"); A("v_add_u32 v5, v5, v6"); A("v_add_u32 v5, 0x20000, v5")
    A("v_and_b32 v6, 7, v3")
    for t in range(2):
        for qd in range(32):
            for e in range(4):
                A("v_accvgpr_read_b32 v%d, a%d" % (24 + e, 128 * t + 4 * qd + e))
            A("s_nop 0")
            for e in range(4): A("v_mul_f32 v%d, v%d, v%d" % (24 + e, 24 + e, 20 + t))
            A("ds_write_b128 v31, v[24:27] offset:%d" % (qd * 1024))
        A("s_waitcnt lgkmcnt(0)"); A("s_barrier")
        A("s_lshl_b32 s34, s26, 13"); A("v_add_u32 v7, s34, v30"); A("v_add_u32 v8, 0x10000, v7")
        for qq in range(8):
            for w in range(4):
                A("ds_read_b128 %s, v%d offset:%d" % (vr(32 + 4 * w, 4), 7 + (w >> 1), (w & 1) * 32768 + qq * 1024))
            A("s_waitcnt lgkmcnt(0)")
            for e in range(4):
                A("v_add_f32 v%d, v%d, v%d" % (32 + e, 32 + e, 36 + e)); A("v_add_f32 v%d, v%d, v%d" % (40 + e, 40 + e, 44 + e))
                A("v_add_f32 v%d, v%d, v%d" % (32 + e, 32 + e, 40 + e))
            A("v_cvt_pk_bf16_f32 v28, v32, v33"); A("v_cvt_pk_bf16_f32 v29, v34, v35")
            A("s_lshl_b32 s34, s26, 3"); A("s_add_u32 s34, s34, %d" % qq)
            A("v_xor_b32 v9, s34, v6"); A("v_lshlrev_b32 v9, 4, v9"); A("v_add_u32 v9, v9, v5")
            A("ds_write_b64 v9, v[28:29] offset:%d" % (t * 16384))
        A("s_waitcnt lgkmcnt(0)"); A("s_barrier")
    if STOP=='3': A('s_branch %s_end' % name)
    srd(A, 36, 40, 41, WO_BYTES)
    A("s_add_u32 s20, s42, 0"); A("s_and_b32 s21, s43, 0xffff"); A("s_mov_b32 s22, 0x%x" % OP_BYTES); A("s_mov_b32 s23, 0x00020000")
    A("s_lshl_b32 s35, s26, 7"); A("s_min_u32 s35, s35, 320")
    A("v_lshrrev_b32 v7, 4, v1"); A("v_and_b32 v8, 15, v1"); A("v_lshrrev_b32 v9, 2, v8"); A("v_xor_b32 v9, v9, v7")
    A("v_lshlrev_b32 v9, 2, v9"); A("v_and_b32 v8, 3, v8"); A("v_or_b32 v9, v9, v8"); A("v_lshlrev_b32 v9, 4, v9")
    A("s_movk_i32 s34, 896"); A("v_mul_lo_u32 v7, v7, s34"); A("v_add_u32 v2, v7, v9")
    A("s_lshl_b32 s34, s35, 1"); A("v_add_u32 v2, s34, v2")
    A("s_lshl_b32 s31, s26, 15")
    A("s_mul_i32 s30, s29, 229376")
    def wo_chunk(c):
        for n in range(8):
            A("s_add_u32 m0, s31, %d" % ((c & 3) * 8192 + n * 1024)); A("s_add_u32 s34, s30, %d" % ((c * 8 + n) * 3584))
            A("buffer_load_dwordx4 v2, s[36:39], s34 offen lds")
    for c in range(4): wo_chunk(c)
    A("v_lshlrev_b32 v5, 9, v3"); A("v_and_b32 v6, 7, v3")
    for jl in range(4):
        A("v_add_u32 v24, %d, v4" % (2 * jl)); A("v_xor_b32 v24, v24, v6"); A("v_lshlrev_b32 v24, 4, v24")
        A("v_add_u32 v24, v24, v5"); A("v_add_u32 v%d, 0x20000, v24" % (8 + jl))
    qfrag_load(0)
    A("v_and_b32 v5, 15, v1"); A("v_lshrrev_b32 v5, 2, v5")
    A("v_lshlrev_b32 v6, 3, v4"); A("v_add_u32 v6, v6, v5"); A("v_lshlrev_b32 v6, 8, v6")
    A("v_lshrrev_b32 v7, 4, v1"); A("v_and_b32 v7, 1, v7"); A("v_lshlrev_b32 v7, 5, v7"); A("v_add_u32 v6, v6, v7")
    A("v_and_b32 v7, 3, v1"); A("v_lshlrev_b32 v7, 3, v7"); A("v_add_u32 v6, v6, v7"); A("v_add_u32 v6, s31, v6")
    for u in range(4):
        A("v_xor_b32 v7, %d, v5" % u); A("v_lshlrev_b32 v7, 6, v7"); A("v_add_u32 v%d, v6, v7" % (16 + u))
    for c in range(8):
        A("s_waitcnt vmcnt(%d)" % (8 * (min(c + 3, 7) - c)))
        for jj in range(2):
            j = 2 * c + jj
            for u in range(4):
                for gg in range(2):
                    A("ds_read_b64_tr_b16 %s, v%d offset:%d" % (vr(32 + 16 * (j & 1) + 4 * u + 2 * gg, 2), 16 + u, (c & 3) * 8192 + (16 * jj + 4 * gg) * 256))
            A("s_waitcnt lgkmcnt(0)")
            for u in range(4):
                for t in range(2):
                    acc = ar(32 * u + 16 * t, 16)
                    A("v_mfma_f32_32x32x16_bf16 %s, %s, %s, %s" % (acc, vr(32 + 16 * (j & 1) + 4 * u, 4), vr(128 + 64 * t + 4 * j, 4), "0" if j == 0 else acc))
        if c + 4 < 8: wo_chunk(c + 4)
    A.nop(16)
    A("s_mul_i32 s34, s29, 896"); A("s_mul_i32 s30, s28, 112"); A("s_add_u32 s34, s34, s30"); A("s_add_u32 s34, s34, s27")
    A("v_add_u32 v5, s34, v3"); A("s_movk_i32 s30, 1792"); A("v_mul_lo_u32 v5, v5, s30")
    A("s_lshl_b32 s34, s35, 2"); A("v_add_u32 v5, s34, v5"); A("v_lshlrev_b32 v6, 4, v4"); A("v_add_u32 v5, v5, v6")
    A("v_add_u32 v6, 57344, v5")
    A("v_cmp_gt_u32 vcc, 24, v3"); A("v_mov_b32 v7, 0x80000000"); A("s_nop 1"); A("v_cndmask_b32 v6, v7, v6, vcc")
    for u in range(4):
        for t in range(2):
            for jj in range(4):
                for e in range(4): A("v_accvgpr_read_b32 v%d, a%d" % (24 + 4 * (jj & 1) + e, 32 * u + 16 * t + 4 * jj + e))
                A("s_nop 0")
                A("buffer_store_dwordx4 %s, v%d, s[20:23], 0 offen offset:%d" % (vr(24 + 4 * (jj & 1), 4), 5 + t, (32 * u + 8 * jj) * 4))
                A("s_nop 1")
    A.label("%s_end" % name); A("s_endpgm")
    for t in range(2):
        M = 20 + t; L = 22 + t; T = 24 + 3 * t
        A.label("%s_sub%d" % (name, t))
        for x in ["v_max_f32 v%d, v%d, v%d" % (T, T, M), "v_sub_f32 v%d, v%d, v%d" % (T + 1, M, T), "v_exp_f32 v%d, v%d" % (T + 1, T + 1),
                  "v_mov_b32 v%d, v%d" % (M, T), "s_nop 7", "s_nop 7", "v_mul_f32 v%d, v%d, v%d" % (L, L, T + 1)]: A(x)
        for r in range(128):
            for x in ["v_accvgpr_read_b32 v%d, a%d" % (T + 2, 128 * t + r), "s_nop 0", "v_mul_f32 v%d, v%d, v%d" % (T + 2, T + 2, T + 1), "s_nop 0",
                      "v_accvgpr_write_b32 a%d, v%d" % (128 * t + r, T + 2)]: A(x)
        A("s_nop 7"); A("s_setpc_b64 s[44:45]")
    return A.text(), kdesc(name, 512, 56, 256)

def gen_reduce16(name):
    A = Asm()
    A.raw(".globl %s" % name); A.raw(".p2align 8"); A.raw(".type %s,@function" % name); A.label(name)
    A("s_cmp_ge_u32 s2, 392"); A("s_cbranch_scc1 %s_end" % name)
    A("s_load_dwordx2 s[4:5], s[0:1], 40"); A("s_load_dwordx2 s[8:9], s[0:1], 56"); A("s_waitcnt lgkmcnt(0)")
    srd(A, 12, 4, 5, 896 * 448 * 2); srd(A, 20, 8, 9, OP_BYTES)
    A("s_lshl_b32 s3, s2, 8"); A("v_add_u32 v1, s3, v0"); A("v_lshlrev_b32 v2, 4, v1")
    A("s_mov_b32 s24, 0")
    for s in range(16):
        A("buffer_load_dwordx4 %s, v2, s[20:23], s24 offen" % vr(8 + 4 * s, 4)); A("s_add_u32 s24, s24, %d" % (896 * 448 * 4))
    for s in range(1, 16):
        A("s_waitcnt vmcnt(%d)" % (15 - s))
        for e in range(4): A("v_add_f32 v%d, v%d, v%d" % (8 + e, 8 + e, 8 + 4 * s + e))
    A("v_cvt_pk_bf16_f32 v4, v8, v9"); A("v_cvt_pk_bf16_f32 v5, v10, v11"); A("v_lshlrev_b32 v3, 3, v1")
    A("buffer_store_dwordx2 v[4:5], v3, s[12:15], 0 offen")
    A.label("%s_end" % name); A("s_endpgm")
    return A.text(), kdesc(name, 80, 40, 80)
```

```python
import sys
from k_fused import gen_fused, gen_reduce16
HDR = """; ws: out partials f32 [16][896][448] @0
; @launch kernel=fused_kernel grid=(256,1,1) block=(256,1,1) lds=163840
; @launch kernel=reduce_kernel grid=(392,1,1) block=(256,1,1) lds=0
.amdgcn_target "amdgcn-amd-amdhsa--gfx950"
.text
"""
out = HDR; descs = ""
for g, n in ((gen_fused, "fused_kernel"), (gen_reduce16, "reduce_kernel")):
    t, d = g(n); out += t; descs += d
open(sys.argv[1], "w").write(out + descs)
```

```python
from asmlib import *
import struct

Q_BYTES = 64 * 224 * 256 * 2
KV_BYTES = 8 * 8 * 1024 * 256 * 2
O_BYTES = 896 * 4096 * 2

def f2u(f):
    return struct.unpack("<I", struct.pack("<f", f))[0]

import os
NOCOMP = os.environ.get('NOCOMP')
NOLOAD = os.environ.get('NOLOAD')
def gen_attn(name):
    A = Asm()
    A.raw(".globl %s" % name)
    A.raw(".p2align 8")
    A.raw(".type %s,@function" % name)
    A.label(name)
    A("s_cmp_ge_u32 s2, 256")
    A("s_cbranch_scc1 %s_end" % name)
    A("s_load_dwordx2 s[4:5], s[0:1], 8")
    A("s_load_dwordx2 s[6:7], s[0:1], 16")
    A("s_load_dwordx2 s[8:9], s[0:1], 56")
    A("s_and_b32 s24, s2, 7")
    A("s_lshr_b32 s25, s2, 3")
    A("s_lshr_b32 s27, s25, 2")
    A("s_and_b32 s25, s25, 3")
    A("s_lshl_b32 s27, s27, 3")
    A("s_add_u32 s24, s24, s27")
    A("v_and_b32 v1, 63, v0")
    A("v_lshrrev_b32 v2, 6, v0")
    A("s_nop 0")
    A("v_readfirstlane_b32 s26, v2")
    A("s_waitcnt lgkmcnt(0)")
    A("s_and_b32 s27, s26, 1")
    A("s_lshr_b32 s28, s26, 1")
    A("s_lshl_b32 s29, s25, 1")
    A("s_add_u32 s29, s29, s27")
    srd(A, 12, 8, 9, Q_BYTES)
    A("s_cmp_lt_u32 s26, 2")
    A("s_cselect_b32 s16, s4, s6")
    A("s_cselect_b32 s17, s5, s7")
    A("s_and_b32 s17, s17, 0xffff")
    A("s_mov_b32 s18, 0x%x" % KV_BYTES)
    A("s_mov_b32 s19, 0x00020000")
    A("s_add_u32 s20, s8, 0x800000")
    A("s_addc_u32 s21, s9, 0")
    A("s_and_b32 s21, s21, 0xffff")
    A("s_mov_b32 s22, 0x%x" % O_BYTES)
    A("s_mov_b32 s23, 0x00020000")
    A("s_mov_b32 s33, 0x%x" % f2u(1.4426950408889634 / 16.0))
    A("v_and_b32 v3, 31, v1")
    A("v_lshrrev_b32 v4, 5, v1")
    A("s_mul_i32 s34, s24, 224")
    A("s_lshl_b32 s35, s29, 5")
    A("s_add_u32 s34, s34, s35")
    A("v_add_u32 v5, s34, v3")
    A("v_lshlrev_b32 v5, 9, v5")
    A("v_lshlrev_b32 v6, 4, v4")
    A("v_add_u32 v5, v5, v6")
    for j in range(16):
        A("buffer_load_dwordx4 %s, v5, s[12:15], 0 offen offset:%d" % (ar(4 * j, 4), 32 * j))
    A("v_lshrrev_b32 v4, 5, v1")
    A("v_and_b32 v6, 31, v1")
    A("s_cmp_lt_u32 s26, 2")
    A("s_cbranch_scc0 %s_vsw" % name)
    for n in range(8):
        A("v_add_u32 v7, %d, v4" % (2 * n))
        A("v_xor_b32 v7, v7, v6")
        A("v_lshlrev_b32 v7, 4, v7")
        A("v_lshlrev_b32 v8, 9, v4")
        A("v_add_u32 v%d, v7, v8" % (28 + n))
    A("s_branch %s_swdone" % name)
    A.label("%s_vsw" % name)
    for n in range(8):
        A("v_add_u32 v7, %d, v4" % (2 * n))
        A("v_and_b32 v7, 3, v7")
        A("v_lshlrev_b32 v7, 2, v7")
        A("v_xor_b32 v7, v7, v6")
        A("v_lshlrev_b32 v7, 4, v7")
        A("v_lshlrev_b32 v8, 9, v4")
        A("v_add_u32 v%d, v7, v8" % (28 + n))
    A.label("%s_swdone" % name)
    A("s_lshl_b32 s30, s24, 19")
    A("s_and_b32 s34, s26, 1")
    A("s_lshl_b32 s34, s34, 18")
    A("s_add_u32 s30, s30, s34")
    A("s_lshl_b32 s31, s26, 14")
    def dma_tile():
        A("s_mov_b32 s34, s30")
        A("s_mov_b32 s35, s31")
        for n in range(16):
            if n % 4 == 0:
                A("s_mov_b32 m0, s35")
            A("s_nop 0")
            A("buffer_load_dwordx4 v%d, s[16:19], s34 offen offset:%d lds" % (28 + (n & 7), (n & 3) * 1024))
            if n % 4 == 3 and n < 15:
                A("s_add_u32 s34, s34, 4096")
                A("s_add_u32 s35, s35, 4096")
    dma_tile()
    A("s_add_u32 s30, s30, 16384")
    A("s_xor_b32 s31, s31, 0x10000")
    A("v_and_b32 v3, 31, v1")
    A("v_lshrrev_b32 v4, 5, v1")
    A("v_and_b32 v5, 15, v1")
    A("v_lshlrev_b32 v6, 9, v3")
    A("s_lshl_b32 s34, s28, 14")
    A("v_add_u32 v6, s34, v6")
    for jj in range(8):
        A("v_add_u32 v7, %d, v4" % (2 * jj))
        A("v_xor_b32 v7, v7, v5")
        A("v_lshlrev_b32 v7, 4, v7")
        A("v_add_u32 v%d, v6, v7" % (16 + jj))
    A("v_and_b32 v5, 15, v1")
    A("v_lshrrev_b32 v5, 2, v5")
    A("v_lshlrev_b32 v6, 2, v4")
    A("v_add_u32 v6, v6, v5")
    A("v_lshlrev_b32 v6, 9, v6")
    A("v_add_u32 v6, s34, v6")
    A("v_add_u32 v6, 32768, v6")
    A("v_lshrrev_b32 v7, 4, v1")
    A("v_and_b32 v7, 1, v7")
    A("v_lshlrev_b32 v7, 5, v7")
    A("v_add_u32 v6, v6, v7")
    A("v_and_b32 v7, 3, v1")
    A("v_lshlrev_b32 v7, 3, v7")
    A("v_add_u32 v6, v6, v7")
    for d in range(4):
        A("v_xor_b32 v7, %d, v5" % d)
        A("v_lshlrev_b32 v7, 6, v7")
        A("v_add_u32 v%d, v6, v7" % (24 + d))
    M, L = 36, 37
    S = 112
    P = 104
    O = 128
    A("v_mov_b32 v%d, 0x%x" % (M, f2u(-1e30)))
    A("v_mov_b32 v%d, 0" % L)
    for r in range(128):
        A("v_mov_b32 v%d, 0" % (O + r))
    A("s_mov_b32 s32, 0")
    A.label("%s_loop" % name)
    A("s_waitcnt vmcnt(0)")
    A("s_barrier")
    A("s_cmp_ge_u32 s32, %d" % (0 if NOLOAD else 15))
    A("s_cbranch_scc1 %s_noload" % name)
    dma_tile()
    A("s_add_u32 s30, s30, 16384")
    A("s_xor_b32 s31, s31, 0x10000")
    A.label("%s_noload" % name)
    KF, VF = 64, 128
    if NOCOMP:
        A('s_branch %s_skipc' % name)
    def kread(j):
        A("ds_read_b128 %s, v%d offset:%d" % (ar(KF + 4 * j, 4), 16 + (j & 7), (j >> 3) * 256))
    for j in range(8):
        kread(j)
    for j in range(16):
        A("s_waitcnt lgkmcnt(%d)" % min(7, 15 - j))
        cin = "0" if j == 0 else vr(S, 16)
        A("v_mfma_f32_32x32x16_bf16 %s, %s, %s, %s" % (vr(S, 16), ar(KF + 4 * j, 4), ar(4 * j, 4), cin))
        if j + 8 <= 15:
            kread(j + 8)
    def vread(x):
        f, g = x >> 1, x & 1
        s_, dt = f >> 3, f & 7
        A("ds_read_b64_tr_b16 %s, v%d offset:%d" % (ar(VF + 4 * f + 2 * g, 2), 24 + (dt & 3), (dt >> 2) * 256 + (16 * s_ + 8 * g) * 512))
    for x in range(12):
        vread(x)
    A.nop(8)
    T0, T1, T2 = 38, 39, 40
    A("v_max3_f32 v%d, v%d, v%d, v%d" % (T0, S, S + 1, S + 2))
    for r in range(3, 15, 2):
        A("v_max3_f32 v%d, v%d, v%d, v%d" % (T0, T0, S + r, S + r + 1))
    A("v_max_f32 v%d, v%d, v%d" % (T0, T0, S + 15))
    A("v_mov_b32 v%d, v%d" % (T1, T0))
    A("v_mov_b32 v%d, v%d" % (T2, T0))
    A("s_nop 1")
    A("v_permlane32_swap_b32 v%d, v%d" % (T1, T2))
    A("v_max_f32 v%d, v%d, v%d" % (T0, T1, T2))
    A("v_mul_f32 v%d, s33, v%d" % (T0, T0))
    A("v_max_f32 v%d, v%d, v%d" % (T0, M, T0))
    A("v_sub_f32 v%d, v%d, v%d" % (T1, M, T0))
    A("v_exp_f32 v%d, v%d" % (T1, T1))
    A("v_mov_b32 v%d, v%d" % (M, T0))
    for r in range(16):
        A("v_fma_f32 v%d, v%d, s33, -v%d" % (S + r, S + r, M))
        A("v_exp_f32 v%d, v%d" % (S + r, S + r))
    A("s_nop 0")
    A("v_mul_f32 v%d, v%d, v%d" % (L, L, T1))
    for r in range(16):
        A("v_add_f32 v%d, v%d, v%d" % (L, L, S + r))
    for r in range(8):
        A("v_cvt_pk_bf16_f32 v%d, v%d, v%d" % (P + r, S + 2 * r, S + 2 * r + 1))
    for r in range(128):
        A("v_mul_f32 v%d, v%d, v%d" % (O + r, O + r, T1))
    A("s_nop 1")
    for f in range(16):
        s_, dt = f >> 3, f & 7
        issued = min(32, max(12, 2 * f + 12))
        A("s_waitcnt lgkmcnt(%d)" % (issued - (2 * f + 2)))
        A("v_mfma_f32_32x32x16_bf16 %s, %s, %s, %s" % (vr(O + 16 * dt, 16), ar(VF + 4 * f, 4), vr(P + 4 * s_, 4), vr(O + 16 * dt, 16)))
        for x in range(issued, min(32, 2 * (f + 1) + 12)):
            vread(x)
    A.label('%s_skipc' % name)
    for a in range(16, 28):
        A("v_xor_b32 v%d, 0x10000, v%d" % (a, a))
    A("s_add_u32 s32, s32, 1")
    A("s_cmp_lt_u32 s32, 16")
    A("s_cbranch_scc1 %s_loop" % name)
    A.nop(16)
    A("v_mov_b32 v%d, v%d" % (T1, L))
    A("v_mov_b32 v%d, v%d" % (T2, L))
    A("s_nop 1")
    A("v_permlane32_swap_b32 v%d, v%d" % (T1, T2))
    A("v_add_f32 v%d, v%d, v%d" % (L, T1, T2))
    A("s_barrier")
    A("v_lshlrev_b32 v3, 4, v1")
    A("s_mul_i32 s34, s27, 34816")
    A("v_add_u32 v3, s34, v3")
    A("v_lshlrev_b32 v4, 2, v1")
    A("v_add_u32 v4, s34, v4")
    A("s_cmp_eq_u32 s28, 0")
    A("s_cbranch_scc1 %s_comb" % name)
    for g in range(32):
        A("ds_write_b128 v3, %s offset:%d" % (vr(O + 4 * g, 4), g * 1024))
    A("ds_write_b32 v4, v%d offset:32768" % M)
    A("ds_write_b32 v4, v%d offset:33024" % L)
    A("s_waitcnt lgkmcnt(0)")
    A("s_barrier")
    A("s_branch %s_end" % name)
    A.label("%s_comb" % name)
    A("s_barrier")
    A("ds_read_b32 v%d, v4 offset:32768" % T1)
    A("ds_read_b32 v%d, v4 offset:33024" % T2)
    A("s_waitcnt lgkmcnt(0)")
    A("v_max_f32 v%d, v%d, v%d" % (T0, M, T1))
    A("v_sub_f32 v%d, v%d, v%d" % (M, M, T0))
    A("v_sub_f32 v%d, v%d, v%d" % (T1, T1, T0))
    A("v_exp_f32 v%d, v%d" % (M, M))
    A("v_exp_f32 v%d, v%d" % (T1, T1))
    A("s_nop 0")
    A("v_mul_f32 v%d, v%d, v%d" % (L, L, M))
    A("v_fmac_f32 v%d, v%d, v%d" % (L, T2, T1))
    A("v_rcp_f32 v%d, v%d" % (L, L))
    A("s_nop 0")
    A("v_mul_f32 v%d, v%d, v%d" % (M, M, L))
    A("v_mul_f32 v%d, v%d, v%d" % (T1, T1, L))
    X = 44
    for g in range(32):
        A("ds_read_b128 %s, v3 offset:%d" % (vr(X + 4 * (g & 1), 4), g * 1024))
        A("s_waitcnt lgkmcnt(0)")
        for e in range(4):
            A("v_mul_f32 v%d, v%d, v%d" % (O + 4 * g + e, O + 4 * g + e, M))
            A("v_fmac_f32 v%d, v%d, v%d" % (O + 4 * g + e, X + 4 * (g & 1) + e, T1))
    A("v_and_b32 v3, 31, v1")
    A("s_lshl_b32 s34, s29, 5")
    A("v_add_u32 v3, s34, v3")
    A("v_cmp_le_u32 vcc, 112, v3")
    A("v_subrev_u32 v4, 112, v3")
    A("s_nop 1")
    A("v_cndmask_b32 v4, v3, v4, vcc")
    A("v_cndmask_b32 v5, 0, 1, vcc")
    A("s_lshr_b32 s34, s24, 3")
    A("s_mul_i32 s34, s34, 112")
    A("v_add_u32 v4, s34, v4")
    A("v_lshlrev_b32 v4, 13, v4")
    A("s_and_b32 s35, s24, 7")
    A("s_lshl_b32 s35, s35, 1")
    A("v_add_u32 v5, s35, v5")
    A("v_lshlrev_b32 v5, 9, v5")
    A("v_add_u32 v4, v4, v5")
    A("v_lshrrev_b32 v6, 5, v1")
    A("v_lshlrev_b32 v6, 3, v6")
    A("v_add_u32 v4, v4, v6")
    A("v_cmp_gt_u32 vcc, 224, v3")
    A("v_mov_b32 v7, 0x80000000")
    A("s_nop 1")
    A("v_cndmask_b32 v4, v7, v4, vcc")
    for dt in range(8):
        for g in range(4):
            r0 = O + 16 * dt + 4 * g
            t = X + 2 * ((4 * dt + g) & 3)
            A("v_cvt_pk_bf16_f32 v%d, v%d, v%d" % (t, r0, r0 + 1))
            A("v_cvt_pk_bf16_f32 v%d, v%d, v%d" % (t + 1, r0 + 2, r0 + 3))
            A("buffer_store_dwordx2 %s, v4, s[20:23], 0 offen offset:%d" % (vr(t, 2), (32 * dt + 8 * g) * 2))
            A("s_nop 1")
    A.label("%s_end" % name)
    A("s_endpgm")
    return A.text(), kdesc(name, 512, 40, 256)
```
